```python
import torch

def _softmax(x, axis=-1):
    return torch.softmax(x, dim=axis)
def _gelu(x):
    return torch.nn.functional.gelu(x, approximate="tanh")
def _silu(x):
    return torch.nn.functional.silu(x)
def _sigmoid(x):
    return torch.sigmoid(x)
def _layernorm(x, axis=-1, eps=1e-5):
    m = x.mean(dim=axis, keepdim=True)
    v = x.var(dim=axis, keepdim=True, unbiased=False)
    return (x - m) / torch.sqrt(v + eps)
def _scatter_add(tgt, idx, src, axis=0):
    return tgt.clone().index_add_(axis, idx, src)
def _segment_sum(src, seg, n):
    out = torch.zeros((n,) + src.shape[1:], dtype=src.dtype)
    return out.index_add_(0, seg, src)
def _pad(x, pw):
    flat = tuple(v for pair in reversed(pw) for v in pair)
    return torch.nn.functional.pad(x, flat)

kernel_name = 'gated_mix__spectral_gfnet__swiglu_ffn__prompt'

def setup_inputs():

    _w = (lambda a: (lambda t: t.to(torch.bfloat16) if t.is_floating_point() else t)(torch.as_tensor(a)))
    def _A_setup():
        B, S, D = 1, 2048, 1024
        Df = D // 2 + 1
        return {
            "x": _w((lambda *s: torch.randn(*s, dtype=torch.bfloat16) * 0.05)(B, S, D)),
            "w_r": _w((lambda *s: torch.randn(*s, dtype=torch.bfloat16) * 1.6)(S, Df) * 0.02),
            "w_i": _w((lambda *s: torch.randn(*s, dtype=torch.bfloat16) * 1.6)(S, Df) * 0.02),
        }
    _A_in = _A_setup()

    def _B_setup():
        B, S, D, F = 1, 2048, 1024, 3584
        return {
            "x": _w((lambda *s: torch.randn(*s, dtype=torch.bfloat16) * 0.05)(B, S, D)),
            "w_gate": _w((lambda *s: torch.randn(*s, dtype=torch.bfloat16) * 0.05)(D, F)),
            "w_up": _w((lambda *s: torch.randn(*s, dtype=torch.bfloat16) * 0.05)(D, F)),
            "w_down": _w((lambda *s: torch.randn(*s, dtype=torch.bfloat16) * 0.05)(F, D)),
        }
    _B_in = _B_setup()

    return {
        "A_x": _A_in["x"],
        "A_w_r": _A_in["w_r"],
        "A_w_i": _A_in["w_i"],
        "B_x": _B_in["x"],
        "B_w_gate": _B_in["w_gate"],
        "B_w_up": _B_in["w_up"],
        "B_w_down": _B_in["w_down"],
        "gate_w": _w((lambda *s: torch.randn(*s, dtype=torch.bfloat16) * 0.05)(1024) * 16.0),
    }

def reference(A_x, A_w_r, A_w_i, B_x, B_w_gate, B_w_up, B_w_down, gate_w):
    def _A_ref(x, w_r, w_i):
        B, S, D = x.shape
        X = (lambda x, axes=(-2,-1): torch.fft.rfft2(x.float(), dim=axes))(x, axes=(-2, -1))
        W = w_r + 1j * w_i
        X = X * W
        y = (lambda x, s, axes=(-2,-1): torch.fft.irfft2(x, s=s, dim=axes).to(torch.bfloat16))(X, (S, D), axes=(-2, -1))
        return y

    def _B_ref(x, w_gate, w_up, w_down):
        g = _silu(x @ w_gate)
        u = x @ w_up
        return (g * u) @ w_down

    x = A_x
    g = _sigmoid((x * gate_w).sum(-1, keepdims=True))
    a = _A_ref(x, A_w_r, A_w_i)
    b = _B_ref(x, B_w_gate, B_w_up, B_w_down)
    return g * a + (1 - g) * b
```

```python
class Asm:
    def __init__(self):
        self.lines = []
        self.kernels = []
        self._lbl = 0
    def __call__(self, s):
        for l in s.strip("\n").split("\n"):
            self.lines.append("    " + l.strip() if not l.strip().endswith(":") else l.strip())
    def label(self, base="L"):
        self._lbl += 1
        return f"{base}_{self._lbl}"
    def begin(self, name):
        self.lines.append(f".globl {name}")
        self.lines.append(".p2align 8")
        self.lines.append(f".type {name},@function")
        self.lines.append(f"{name}:")
    def text(self, launches, descs, header=""):
        out = []
        out.append(header.rstrip("\n")) if header else None
        for (name, grid, block, lds) in launches:
            out.append(f"; @launch kernel={name} grid=({grid[0]},{grid[1]},{grid[2]}) block=({block[0]},{block[1]},{block[2]}) lds={lds}")
        out.append('.amdgcn_target "amdgcn-amd-amdhsa--gfx950"')
        out.append(".text")
        out += self.lines
        out.append('.section .rodata,"a"')
        for (name, vgpr, sgpr, accum) in descs:
            out.append(".p2align 6")
            out.append(f".amdhsa_kernel {name}")
            out.append(f"  .amdhsa_next_free_vgpr {vgpr}")
            out.append(f"  .amdhsa_next_free_sgpr {sgpr}")
            out.append(f"  .amdhsa_accum_offset {accum}")
            out.append("  .amdhsa_group_segment_fixed_size 0")
            out.append("  .amdhsa_kernarg_size 88")
            out.append("  .amdhsa_user_sgpr_count 2")
            out.append("  .amdhsa_user_sgpr_kernarg_segment_ptr 1")
            out.append("  .amdhsa_system_sgpr_workgroup_id_x 1")
            out.append("  .amdhsa_float_denorm_mode_32 3")
            out.append("  .amdhsa_float_denorm_mode_16_64 3")
            out.append(".end_amdhsa_kernel")
        return "\n".join(out) + "\n"
```

```python
from gen import *

def dq(q, h=0): return 8*(q >> 2) + 4*h + (q & 3)

def mf32(d, a_, b_, c=None):
    cs = "0" if c is None else f"v[{c}:{c+15}]"
    return f"v_mfma_f32_32x32x16_bf16 v[{d}:{d+15}], v[{a_}:{a_+3}], v[{b_}:{b_+3}], {cs}"

CR, CI, NCI, A1, A2 = 12, 20, 28, 36, 44
TW1 = 52
XFR = 84
YR, YI = 100, 116
OUT, PRV = 132, 148
PK = 192
XC = [36, 100]; WC = [68, 132]; AC = 164; TF = 228
LDS_F64, LDS_TWF, LDS_TWI, LDS_P, LDS_B = 0, 24576, 40960, 65536, 57344

def gen_frag_table(a, dst, rowreg, n, off_reg=None, neg=False, fn="cos"):
    inv = {32: "0x3d000000", 64: "0x3c800000"}[n]
    for ks in range(2):
        for ip in range(4):
            for e in range(2):
                i = 2*ip + e
                a(f"v_add_u32 v6, {16*ks + 8*(i >> 2) + (i & 3)}, v5")
                a(f"v_mul_u32_u24 v6, v6, v{rowreg}")
                a(f"v_and_b32 v6, {n-1}, v6")
                a(f"v_cvt_f32_u32 v6, v6")
                if off_reg is None: a(f"v_mul_f32 v6, {inv}, v6")
                else: a(f"v_fmamk_f32 v6, v6, {inv}, v{off_reg}")
                a(f"v_{fn}_f32 v{7+e}, {'-' if neg else ''}v6")
            a("s_nop 0")
            a(f"v_cvt_pk_bf16_f32 v{dst + 4*ks + ip}, v7, v8")

def cmul_cvt(a, re, im, c, s, t, dre, dim):
    a(f"v_pk_mul_f32 v[{t}:{t+1}], v[{re}:{re+1}], v[{c}:{c+1}]")
    a(f"v_pk_mul_f32 v[{re}:{re+1}], v[{re}:{re+1}], v[{s}:{s+1}]")
    a(f"v_pk_fma_f32 v[{t}:{t+1}], v[{im}:{im+1}], v[{s}:{s+1}], v[{t}:{t+1}] neg_lo:[1,0,0] neg_hi:[1,0,0]")
    a(f"v_pk_fma_f32 v[{re}:{re+1}], v[{im}:{im+1}], v[{c}:{c+1}], v[{re}:{re+1}]")
    a(f"v_cvt_pk_bf16_f32 v{dre}, v{t}, v{t+1}")
    a(f"v_cvt_pk_bf16_f32 v{dim}, v{re}, v{re+1}")

def twiddle_stage(a, op, table):
    n = 0
    def rd(n): return f"ds_read_b128 v[{TF+4*(n%6)}:{TF+4*(n%6)+3}], v{V_LN} offset:{table + n*1024}"
    for n in range(5): a(rd(n))
    for n in range(16):
        blk, qp = n >> 3, n & 7
        if n + 5 < 16: a(rd(n+5))
        a(f"s_waitcnt lgkmcnt({min(5, 15-n)})")
        t = TF + 4*(n % 6)
        cmul_cvt(a, AC + 32*blk + 2*qp, AC + 32*blk + 16 + 2*qp, t, t+2, 2 + 2*(n & 1), op + 8*blk + qp, op + 16 + 8*blk + qp)

def stage_f64(a, op, fwd):
    def rd(n):
        t = TF + 12*(n & 1)
        return [f"ds_read_b128 v[{t+4*m}:{t+4*m+3}], v{V_LN} offset:{LDS_F64 + m*8192 + n*1024}" for m in range(3)]
    for l in rd(0): a(l)
    for n in range(8):
        ob, ks = n >> 2, n & 3
        if n + 1 < 8:
            for l in rd(n+1): a(l)
            a("s_waitcnt lgkmcnt(3)")
        else:
            a("s_waitcnt lgkmcnt(0)")
        t = TF + 12*(n & 1)
        cr, ci, nci = t, t+4, t+8
        dr, di = op + 4*ks, op + 16 + 4*ks
        re, im = AC + 32*ob, AC + 32*ob + 16
        z = ks == 0
        if fwd:
            a(mf32(re, cr, dr, None if z else re)); a(mf32(im, ci, dr, None if z else im))
            a(mf32(re, nci, di, re)); a(mf32(im, cr, di, im))
        else:
            a(mf32(re, dr, cr, None if z else re)); a(mf32(im, di, cr, None if z else im))
            a(mf32(re, di, ci, re)); a(mf32(im, dr, nci, im))

def stage_f32(a, op, fwd):
    for blk in range(2):
        re, im = AC + 32*blk, AC + 32*blk + 16
        for ks in range(2):
            dr, di = op + 8*blk + 4*ks, op + 16 + 8*blk + 4*ks
            z = ks == 0
            if fwd:
                a(mf32(re, dr, CR+4*ks, None if z else re)); a(mf32(im, dr, CI+4*ks, None if z else im))
                a(mf32(re, di, NCI+4*ks, re)); a(mf32(im, di, CR+4*ks, im))
            else:
                a(mf32(re, dr, CR+4*ks, None if z else re)); a(mf32(im, di, CR+4*ks, None if z else im))
                a(mf32(re, di, CI+4*ks, re)); a(mf32(im, dr, NCI+4*ks, im))

def wmul(a, op, w):
    for n in range(16):
        fb, qp = n >> 3, n & 7
        t = TF + 4*(n & 1)
        w0 = w + 16*fb + 2*qp
        a(f"v_lshlrev_b32 v{t}, 16, v{w0}")
        a(f"v_lshlrev_b32 v{t+1}, 16, v{w0+1}")
        a(f"v_and_b32 v{t+2}, 0xffff0000, v{w0}")
        a(f"v_and_b32 v{t+3}, 0xffff0000, v{w0+1}")
        cmul_cvt(a, AC + 32*fb + 2*qp, AC + 32*fb + 16 + 2*qp, t, t+2, 2 + 2*(n & 1), op + 8*fb + qp, op + 16 + 8*fb + qp)

def wmul_packed(a, op, w):
    a(f"""
    v_and_b32 v6, 31, v11
    v_lshrrev_b32 v7, 5, v11
    v_lshl_add_u32 v6, v7, 7, v6          ; f1 + 128 h
    v_lshlrev_b32 v7, 2, v6
    v_add_u32 v7, {LDS_P}, v7
    v_sub_u32 v6, 160, v6
    v_lshlrev_b32 v6, 2, v6
    v_add_u32 v6, {LDS_P}, v6
    """)
    IM = 8448
    for fb in range(2):
        for q in range(16):
            c = 32*fb + dq(q)
            a(f"ds_write_b32 v7, v{AC+32*fb+q} offset:{c*128}")
            a(f"ds_write_b32 v7, v{AC+32*fb+16+q} offset:{IM + c*128}")
    a(f"""
    s_mov_b64 exec, 1
    ds_write_b32 v7, v{AC} offset:8192
    ds_write_b32 v7, v{AC+16} offset:{IM + 8192}
    s_mov_b64 exec, -1
    s_waitcnt lgkmcnt(0)
    """)
    for n in range(16):
        fb, qp = n >> 3, n & 7
        t = TF
        re, im = AC + 32*fb + 2*qp, AC + 32*fb + 16 + 2*qp
        w0 = w + 16*fb + 2*qp
        for e in range(2):
            c = 32*fb + dq(2*qp + e)
            a(f"ds_read_b32 v{t+8+e}, v6 offset:{(59-c)*128}")
            a(f"ds_read_b32 v{t+10+e}, v6 offset:{IM + (59-c)*128}")
        a(f"ds_read_b64 v[{t+12}:{t+13}], v{V_LN} offset:{LDS_B + (n >> 1)*1024 + (n & 1)*8}")
        a(f"""
        v_lshlrev_b32 v{t}, 16, v{w0}
        v_lshlrev_b32 v{t+1}, 16, v{w0+1}
        v_and_b32 v{t+2}, 0xffff0000, v{w0}
        v_and_b32 v{t+3}, 0xffff0000, v{w0+1}
        v_pk_mul_f32 v[2:3], v[{re}:{re+1}], v[{t}:{t+1}]
        v_pk_mul_f32 v[{re}:{re+1}], v[{re}:{re+1}], v[{t+2}:{t+3}]
        v_pk_fma_f32 v[2:3], v[{im}:{im+1}], v[{t+2}:{t+3}], v[2:3] neg_lo:[1,0,0] neg_hi:[1,0,0]
        v_pk_fma_f32 v[{re}:{re+1}], v[{im}:{im+1}], v[{t}:{t+1}], v[{re}:{re+1}]
        s_waitcnt lgkmcnt(0)
        v_lshlrev_b32 v{t+4}, 16, v{t+12}
        v_lshlrev_b32 v{t+5}, 16, v{t+13}
        v_and_b32 v{t+6}, 0xffff0000, v{t+12}
        v_and_b32 v{t+7}, 0xffff0000, v{t+13}
        v_pk_fma_f32 v[2:3], v[{t+8}:{t+9}], v[{t+4}:{t+5}], v[2:3]
        v_pk_fma_f32 v[{re}:{re+1}], v[{t+8}:{t+9}], v[{t+6}:{t+7}], v[{re}:{re+1}]
        v_pk_fma_f32 v[2:3], v[{t+10}:{t+11}], v[{t+6}:{t+7}], v[2:3]
        v_pk_fma_f32 v[{re}:{re+1}], v[{t+10}:{t+11}], v[{t+4}:{t+5}], v[{re}:{re+1}] neg_lo:[1,0,0] neg_hi:[1,0,0]
        v_cvt_pk_bf16_f32 v{op + 8*fb + qp}, v2, v3
        v_cvt_pk_bf16_f32 v{op + 16 + 8*fb + qp}, v{re}, v{re+1}
        """)

def gen_k1_fft(a, opt):
    srd(a, 20, "s46", "s47", WS_BYTES)
    srd(a, 52, "s48", "s49", D*2)
    srd(a, 76, "s36", "s37", S*513*2)
    srd(a, 80, "s38", "s39", S*513*2)
    srd(a, 92, "s44", "s45", 256)
    a(f"""
    s_lshl_b32 s25, s28, 2
    s_add_u32 s25, s25, s29
    s_sub_u32 s25, s25, 28            ; j = 0..31
    s_lshr_b32 s30, s25, 4            ; ks
    s_bfe_u32 s31, s25, 0x10003       ; h
    s_lshl_b32 s50, s30, 4
    s_lshl_b32 s51, s31, 2
    s_add_u32 s50, s50, s51
    s_lshl_b32 s50, s50, 6
    s_and_b32 s51, s25, 7
    s_lshl_b32 s51, s51, 3
    s_add_u32 s50, s50, s51
    s_add_u32 s50, s50, s3
    s_lshl_b32 s50, s50, 11
    s_lshl_b32 s51, s3, 14
    """)
    for i in range(8):
        for hf in range(2):
            a(f"s_add_u32 m0, s51, {i*2048}")
            a(f"s_add_u32 s56, s50, {(8*(i >> 2) + (i & 3))*64*2048}")
            a(f"buffer_load_dwordx4 v{V_LN}, s[8:11], s56 offen offset:{hf*1024} lds")
    a(f"""
    s_lshr_b32 s84, s25, 1
    s_and_b32 s85, s25, 1
    s_lshl_b32 s86, s84, 7
    s_lshl_b32 s87, s3, 2
    s_add_u32 s86, s86, s87
    v_lshrrev_b32 v2, 4, v11
    v_add_u32 v3, s86, v2
    v_mul_u32_u24 v3, 1026, v3
    v_and_b32 v4, 15, v11
    v_lshl_add_u32 v3, v4, 4, v3
    s_lshl_b32 s87, s85, 9
    """)
    for r in range(4):
        for bb in range(2):
            a(f"buffer_load_dwordx4 v[{PK+32*bb+4*r}:{PK+32*bb+4*r+3}], v3, s[76:79], s87 offen offset:{bb*256}")
            a(f"buffer_load_dwordx4 v[{PK+32*bb+16+4*r}:{PK+32*bb+16+4*r+3}], v3, s[80:83], s87 offen offset:{bb*256}")
        a(f"s_add_u32 s87, s87, {32*1026}")
    a(f"""
    s_lshl_b32 s56, s25, 9
    v_add_u32 v176, s56, v0           ; f
    v_sub_u32 v177, 2048, v176
    v_and_b32 v177, 2047, v177
    v_mul_u32_u24 v178, 1026, v176
    v_mul_u32_u24 v177, 1026, v177
    s_cmp_ge_u32 s25, 4
    s_cbranch_scc1 F_noab0
    buffer_load_ushort v180, v178, s[76:79], 0 offen
    buffer_load_ushort v181, v177, s[76:79], 0 offen
    buffer_load_ushort v182, v178, s[76:79], 0 offen offset:1024
    buffer_load_ushort v183, v177, s[76:79], 0 offen offset:1024
    buffer_load_ushort v184, v178, s[80:83], 0 offen
    buffer_load_ushort v185, v177, s[80:83], 0 offen
    buffer_load_ushort v186, v178, s[80:83], 0 offen offset:1024
    buffer_load_ushort v187, v177, s[80:83], 0 offen offset:1024
    F_noab0:
    """)
    a(f"""
    v_lshrrev_b32 v5, 5, v11
    v_lshlrev_b32 v5, 2, v5           ; 4h
    v_and_b32 v9, 31, v11             ; lane & 31
    """)
    gen_frag_table(a, CR, 9, 32)
    gen_frag_table(a, CI, 9, 32, neg=True, fn="sin")
    for i in range(8): a(f"v_xor_b32 v{NCI+i}, 0x80008000, v{CI+i}")
    a(f"""
    v_bfe_u32 v100, v11, 4, 1
    v_cvt_f32_u32 v100, v100
    v_mul_f32 v100, 0.25, v100        ; rows 16..31 : quarter turn
    v_subrev_f32 v101, 0.25, v100
    v_and_b32 v9, 15, v11
    """.replace("0.25", "0x3e800000"))
    gen_frag_table(a, A1, 9, 32, off_reg=100)
    gen_frag_table(a, A2, 9, 32, off_reg=101)
    a("v_and_b32 v9, 31, v11")
    for q in range(16):
        a(f"""
        v_add_u32 v6, {dq(q)}, v5
        v_mul_u32_u24 v6, v6, v9
        v_cvt_f32_u32 v6, v6
        v_mul_f32 v6, 0x3a800000, v6
        v_cos_f32 v{TW1+q}, v6
        v_sin_f32 v{TW1+16+q}, -v6
        """)
    ts(a, 6, opt)
    a("s_waitcnt vmcnt(0)")
    ts(a, 7, opt)
    a(f"""
    s_lshl_b32 s58, s85, 21
    s_lshl_b32 s59, s84, 9
    s_add_u32 s58, s58, s59
    s_lshl_b32 s59, s3, 6
    s_add_u32 s58, s58, s59
    s_add_u32 s58, s58, {OFF_WIMG}
    v_lshlrev_b32 v4, 16, v4
    v_lshl_add_u32 v4, v2, 4, v4
    s_mov_b32 s88, 0x05040100
    s_mov_b32 s89, 0x07060302
    """)
    for bb in range(2):
        for e in range(8):
            o = YR + 4*e
            for r in range(4):
                a(f"v_perm_b32 v{o+r}, v{PK+32*bb+16+4*r+(e >> 1)}, v{PK+32*bb+4*r+(e >> 1)}, {'s89' if e & 1 else 's88'}")
            a(f"s_add_u32 s59, s58, {(bb*128 + e)*8192}")
            a(f"buffer_store_dwordx4 v[{o}:{o+3}], v4, s[20:23], s59 offen sc1")
        a("s_nop 1")
    a(f"""
    s_cmp_ge_u32 s25, 4
    s_cbranch_scc1 F_noab1
    """)
    for i in range(8): a(f"v_lshlrev_b32 v{180+i}, 16, v{180+i}")
    a(f"""
    v_add_f32 v180, v180, v181
    v_add_f32 v182, v182, v183
    v_sub_f32 v184, v184, v185
    v_sub_f32 v186, v186, v187
    v_add_f32 v181, v180, v182
    v_sub_f32 v183, v180, v182
    v_add_f32 v185, v184, v186
    v_sub_f32 v187, v184, v186
    v_mul_f32 v181, 0x3e000000, v181
    v_mul_f32 v183, 0x3e000000, v183
    v_mul_f32 v185, 0x3e000000, v185
    v_mul_f32 v187, 0x3e000000, v187
    v_cvt_pk_bf16_f32 v180, v181, v185
    v_cvt_pk_bf16_f32 v182, v183, v187
    v_and_b32 v177, 31, v176
    v_lshrrev_b32 v178, 5, v176
    v_and_b32 v179, 3, v178
    v_lshrrev_b32 v178, 2, v178
    v_lshl_add_u32 v177, v178, 5, v177
    v_lshl_add_u32 v177, v177, 2, v179
    v_lshlrev_b32 v177, 2, v177
    s_mov_b32 s58, {OFF_WIMG + 512*8192}
    s_mov_b32 s59, {OFF_WIMG + 513*8192}
    buffer_store_dword v180, v177, s[20:23], s58 offen sc1
    buffer_store_dword v182, v177, s[20:23], s59 offen sc1
    F_noab1:
    """)
    a(f"""
    v_bfe_u32 v6, v11, 2, 2
    v_add_u32 v6, v6, v5
    v_lshlrev_b32 v6, 6, v6
    v_bfe_u32 v7, v11, 4, 1
    v_lshl_add_u32 v6, v7, 5, v6
    v_and_b32 v7, 3, v11
    v_lshl_add_u32 v6, v7, 3, v6
    v_add_u32 v9, s51, v6
    s_mov_b64 s[34:35], 1
    """)
    for i in range(8):
        o = OUT if i & 1 else PRV
        for ks in range(2):
            for j in range(2):
                a(f"ds_read_b64_tr_b16 v[{XFR+4*ks+2*j}:{XFR+4*ks+2*j+1}], v9 offset:{i*2048 + ks*1024 + j*512}")
        a("s_waitcnt lgkmcnt(0)")
        a(mf32(YR, XFR, CR)); a(mf32(YI, XFR, CI)); a(mf32(YR, XFR+4, CR+4, YR)); a(mf32(YI, XFR+4, CI+4, YI))
        a("s_nop 11")
        a(f"v_pk_add_f32 v[6:7], v[{YR}:{YR+1}], v[{YR+2}:{YR+3}]")
        for q in range(4, 16, 2): a(f"v_pk_add_f32 v[6:7], v[6:7], v[{YR+q}:{YR+q+1}]")
        a(f"""
        v_sub_f32 v6, v6, v7
        s_nop 0
        v_readlane_b32 s58, v6, 0
        v_readlane_b32 s59, v6, 32
        """)
        for qp in range(8):
            cmul_cvt(a, YR+2*qp, YI+2*qp, TW1+2*qp, TW1+16+2*qp, 188 + 2*(qp & 1), XFR+qp, XFR+8+qp)
        a(f"v_mov_b32 v6, s58")
        a(f"v_add_f32 v6, s59, v6")
        a(mf32(o, A1, XFR)); a(mf32(o, A2, XFR+8, o)); a(mf32(o, A1+4, XFR+4, o)); a(mf32(o, A2+4, XFR+12, o))
        a("s_nop 11")
        a(f"v_cndmask_b32 v{o+8}, v{o+8}, v6, s[34:35]")
        if i & 1:
            for q in range(16): a(f"v_cvt_pk_bf16_f32 v{PK+4*q+(i >> 1)}, v{PRV+q}, v{OUT+q}")
    a(f"""
    s_barrier
    v_and_b32 v6, 31, v11
    v_lshl_add_u32 v6, v5, 5, v6          ; k1 + 128 h
    v_lshlrev_b32 v6, 8, v6
    v_and_b32 v7, 7, v11
    v_xor_b32 v7, s3, v7
    v_lshl_add_u32 v6, v7, 4, v6
    v_add_u32 v7, 65536, v6
    """)
    for q in range(16):
        jh = q >> 2
        a(f"ds_write_b128 v{6 + (jh & 1)}, v[{PK+4*q}:{PK+4*q+3}] offset:{(q & 3)*8192 + (jh >> 1)*128}")
    a(f"""
    s_waitcnt lgkmcnt(0)
    s_barrier
    v_lshlrev_b32 v6, 4, v0
    v_add_u32 v7, 65536, v6
    """)
    for it in range(16):
        a(f"ds_read_b128 v[{PK+4*it}:{PK+4*it+3}], v{6 + (it >> 3)} offset:{(it & 7)*8192}")
    a(f"""
    v_lshrrev_b32 v2, 4, v0
    v_xor_b32 v3, v2, v0
    v_and_b32 v3, 7, v3
    v_lshlrev_b32 v2, 13, v2
    v_lshl_add_u32 v2, v3, 4, v2
    v_bfe_u32 v3, v0, 3, 1
    v_lshl_add_u32 v2, v3, 12, v2
    s_bfe_u32 s58, s25, 0x10002
    s_lshl_b32 s58, s58, 11
    s_lshl_b32 s59, s30, 10
    s_add_u32 s58, s58, s59
    s_lshl_b32 s59, s31, 9
    s_add_u32 s58, s58, s59
    s_and_b32 s59, s25, 3
    s_lshl_b32 s59, s59, 7
    s_add_u32 s58, s58, s59
    s_add_u32 s58, s58, {OFF_X1}
    """)
    for it in range(16):
        a(f"s_waitcnt lgkmcnt({min(15, 15-it)})")
        a(f"buffer_store_dwordx4 v[{PK+4*it}:{PK+4*it+3}], v2, s[20:23], s58 offen sc1")
        a(f"s_add_u32 s58, s58, {32*8192}")
    ts(a, 1, opt)
    a("s_barrier")
    a(f"""
    v_and_b32 v9, 31, v11
    s_lshr_b32 s58, s3, 2
    s_lshl_b32 s58, s58, 5
    v_add_u32 v9, s58, v9                 ; row
    s_and_b32 s58, s3, 3
    s_lshl_b32 s58, s58, 4
    v_add_u32 v4, s58, v5                 ; 16 ks + 4 h
    """)
    for ip in range(4):
        for e in range(2):
            i = 2*ip + e
            a(f"""
            v_add_u32 v6, {8*(i >> 2) + (i & 3)}, v4
            v_mul_u32_u24 v6, v6, v9
            v_and_b32 v6, 63, v6
            v_cvt_f32_u32 v6, v6
            v_mul_f32 v6, 0x3c800000, v6
            v_cos_f32 v{100+e}, v6
            v_sin_f32 v{102+e}, v6
            """)
        a(f"""
        s_nop 0
        v_cvt_pk_bf16_f32 v{104+ip}, v100, v101
        v_cvt_pk_bf16_f32 v{112+ip}, v102, v103
        v_xor_b32 v{108+ip}, 0x80008000, v{112+ip}
        """)
    a(f"""
    v_lshlrev_b32 v6, 4, v0
    ds_write_b128 v6, v[104:107] offset:{LDS_F64}
    ds_write_b128 v6, v[108:111] offset:{LDS_F64 + 8192}
    ds_write_b128 v6, v[112:115] offset:{LDS_F64 + 16384}
    s_lshr_b32 s58, s3, 1
    s_lshl_b32 s58, s58, 3
    s_and_b32 s59, s3, 1
    s_lshl_b32 s59, s59, 1
    s_add_u32 s58, s58, s59
    v_add_u32 v4, s58, v5
    v_and_b32 v9, 31, v11
    s_mov_b32 s59, 0x35800000
    """)
    for blk in range(2):
        for e in range(2):
            a(f"""
            v_add_u32 v7, {32*blk + e}, v4
            v_mul_u32_u24 v7, v7, v9
            v_cvt_f32_u32 v7, v7
            v_mul_f32 v7, 0x3a000000, v7
            v_cos_f32 v{116+8*blk+e}, v7
            v_sin_f32 v{118+8*blk+e}, -v7
            v_add_u32 v7, {e}, v4
            v_add_u32 v8, {32*blk}, v9
            v_mul_u32_u24 v7, v7, v8
            v_cvt_f32_u32 v7, v7
            v_mul_f32 v7, 0x3a000000, v7
            v_cos_f32 v{120+8*blk+e}, v7
            v_sin_f32 v{122+8*blk+e}, v7
            s_nop 0
            v_mul_f32 v{120+8*blk+e}, s59, v{120+8*blk+e}
            v_mul_f32 v{122+8*blk+e}, s59, v{122+8*blk+e}
            """)
        a(f"ds_write_b128 v6, v[{116+8*blk}:{119+8*blk}] offset:{LDS_TWF + blk*8192}")
        a(f"ds_write_b128 v6, v[{120+8*blk}:{123+8*blk}] offset:{LDS_TWI + blk*8192}")
    a(f"""
    s_waitcnt vmcnt(0) lgkmcnt(0)
    s_barrier
    s_cmp_lg_u32 s3, 0
    s_cbranch_scc1 F_wait
    v_mov_b32 v2, 1
    v_mov_b32 v3, 0
    s_mov_b64 exec, 1
    buffer_atomic_add v2, v3, s[92:95], 0 offen sc1
    s_mov_b32 s58, 0
    F_poll:
    buffer_load_dword v2, v3, s[92:95], 0 offen sc1
    s_waitcnt vmcnt(0)
    v_readfirstlane_b32 s59, v2
    s_add_u32 s58, s58, 1
    s_cmp_ge_u32 s59, 32
    s_cbranch_scc1 F_got
    s_sleep 2
    s_cmp_lt_u32 s58, 0x40000
    s_cbranch_scc1 F_poll
    F_got:
    s_mov_b64 exec, -1
    buffer_inv sc1
    s_waitcnt vmcnt(0)
    F_wait:
    s_barrier
    """)
    ts(a, 2, opt)
    a(f"""
    s_lshl_b32 s50, s25, 4
    s_add_u32 s50, s50, s3
    s_lshl_b32 s56, s50, 13
    s_add_u32 s57, s56, {OFF_WIMG}
    s_add_u32 s56, s56, {OFF_X1}
    s_cmp_eq_u32 s50, 0
    s_cselect_b32 s57, {OFF_WIMG + 512*8192}, s57
    """)
    for c in range(2):
        for half in range(2):
            a(f"s_add_u32 s58, s56, {c*65536 + half*4096}")
            for n in range(4):
                o = XC[c] + 16*half + 4*n
                a(f"buffer_load_dwordx4 v[{o}:{o+3}], v{V_LN}, s[20:23], s58 offen offset:{n*1024}")
        if c == 1:
            a(f"s_lshl_b32 s57, s50, 13")
            a(f"s_add_u32 s57, s57, {OFF_WIMG + 65536}")
        for half in range(2):
            a(f"s_add_u32 s58, s57, {half*4096}")
            for n in range(4):
                o = WC[c] + 16*half + 4*n
                a(f"buffer_load_dwordx4 v[{o}:{o+3}], v{V_LN}, s[20:23], s58 offen offset:{n*1024}")
        if c == 0:
            a(f"""
            s_cmp_lg_u32 s50, 0
            s_cbranch_scc1 F_nob
            """)
            for n in range(8):
                a(f"s_mov_b32 m0, {LDS_B + (n >> 2)*4096}")
                a(f"s_mov_b32 s58, {OFF_WIMG + 513*8192 + (n >> 2)*4096}")
                a(f"buffer_load_dwordx4 v{V_LN}, s[20:23], s58 offen offset:{(n & 3)*1024} lds")
            a("s_waitcnt vmcnt(0)")
            a("F_nob:")
    a(f"""
    v_and_b32 v8, 31, v11
    v_lshlrev_b32 v8, 17, v8
    v_lshrrev_b32 v9, 5, v11
    v_lshl_add_u32 v8, v9, 14, v8     ; Z voffset
    """)
    for c in range(2):
        op = XC[c]
        a(f"s_waitcnt vmcnt({24 if c == 0 else 16})")
        stage_f32(a, op, True)
        a("s_nop 3")
        twiddle_stage(a, op, LDS_TWF)
        a("s_nop 0")
        stage_f64(a, op, True)
        a(f"s_waitcnt vmcnt({16 if c == 0 else 8})")
        a("s_nop 3")
        if c == 0:
            a("s_cmp_eq_u32 s50, 0")
            a("s_cbranch_scc1 F_packed")
        wmul(a, op, WC[c])
        if c == 0: a("F_packed_done:")
        a("s_nop 0")
        stage_f64(a, op, False)
        a("s_nop 3")
        twiddle_stage(a, op, LDS_TWI)
        a("s_nop 1")
        stage_f32(a, op, False)
        a(f"""
        s_lshl_b32 s58, s50, 5
        s_add_u32 s58, s58, {OFF_Z + c*256}
        s_nop 1
        """)
        for blk in range(2):
            for jj in range(2):
                a(f"s_add_u32 s59, s58, {(blk*4 + jj*2)*16384}")
                for p in range(2):
                    o = op + 16*p + 8*blk + 4*jj
                    src = AC + 32*blk + 16*p + 8*jj
                    for e in range(4): a(f"v_cvt_pk_bf16_f32 v{o+e}, v{src+2*e}, v{src+2*e+1}")
                    a(f"buffer_store_dwordx4 v[{o}:{o+3}], v8, s[20:23], s59 offen offset:{p*16}")
        ts(a, 3 + c, opt)
    for g in chore_gate_loads(CH):
        for l in g: a(l)
    a("s_waitcnt vmcnt(0)")
    for g in chore_gate_compute(CH):
        for l in g: a(l)
    ts(a, 5, opt)
    ts_flush(a, opt, 0, 8)
    a("s_endpgm")
    a("F_packed:")
    a("s_nop 7")
    wmul_packed(a, XC[0], WC[0])
    a("s_branch F_packed_done")
```

```python
from gen import *

K2_LDS = 147456
NST = 28
LZ = 131072
ACC = 64
HF = [128, 160]; DF = [144, 176]
V_HRD = 2
V_DRD = 12
def kacc(mb, nb): return ACC + (4*mb + nb)*4

def mf16(d, a_, b_, c):
    cs = "0" if c is None else f"v[{c}:{c+3}]"
    return f"v_mfma_f32_16x16x32_bf16 v[{d}:{d+3}], v[{a_}:{a_+3}], v[{b_}:{b_+3}], {cs}"

def k2_reads(buf, t, kk):
    slot = t % 4
    so = (slot & 1)*32768; hi = slot >> 1
    def hr(mb):
        o = HF[buf] + 4*mb
        return [f"ds_read_b128 v[{o}:{o+3}], v{V_HRD + hi} offset:{so + kk*8192 + mb*1024}"]
    def dr(nb, j):
        o = DF[buf] + 4*nb + 2*j
        return [f"ds_read_b64_tr_b16 v[{o}:{o+1}], v{V_DRD + 4*hi + nb} offset:{so + 16384 + kk*8192 + j*4096}"]
    r = [hr(0)]
    for nb in range(4): r += [dr(nb, 0), dr(nb, 1)]
    r += [hr(1), hr(2), hr(3)]
    return r

def k2_mfmas(buf, first=False):
    m = []
    for mb in range(4):
        for nb in (range(4) if mb % 2 == 0 else range(3, -1, -1)):
            c = kacc(mb, nb)
            m.append(mf16(c, DF[buf] + 4*nb, HF[buf] + 4*mb, None if first else c))
    return m

def k2_issue(a, t):
    slot = t % 4
    for hf in range(2):
        a(f"s_add_u32 m0, s24, {slot*32768 + hf*4096}")
        a(f"s_add_u32 s33, s30, {t*16384 + hf*4096}")
        for n in range(4):
            a(f"buffer_load_dwordx4 v{V_LN}, s[20:23], s33 offen offset:{n*1024} lds")
    for i in range(8):
        a(f"s_add_u32 m0, s24, {slot*32768 + 16384 + i*1024}")
        a(f"s_add_u32 s33, s31, {t*64*2048 + i*8192}")
        a(f"buffer_load_dwordx4 v{2 + (i & 1)}, s[12:15], s33 offen lds")

def poll(a, lbl, srdreg, soff, target, vtmp):
    a(f"""
    v_mov_b32 v{vtmp+1}, 0
    s_mov_b32 s90, 0
    {lbl}:
    buffer_load_dword v{vtmp}, v{vtmp+1}, s[{srdreg}:{srdreg+3}], {soff} offen sc1
    s_waitcnt vmcnt(0)
    v_readfirstlane_b32 s91, v{vtmp}
    s_add_u32 s90, s90, 1
    s_cmp_ge_u32 s91, {target}
    s_cbranch_scc1 {lbl}_ok
    s_sleep 1
    s_cmp_lt_u32 s90, 0x40000
    s_cbranch_scc1 {lbl}
    {lbl}_ok:
    """)

def gen_pass3(a, opt):
    b = Asm()
    BRE, BIM, C2, S2 = 12, 20, 28, 36
    AF = 44
    T = 76
    TP = 140
    ZI = 204
    O = 76
    b(f"""
    s_sub_u32 s25, s3, 4
    s_lshl_b32 s30, s2, 14
    s_lshl_b32 s31, s25, 13
    s_add_u32 s30, s30, s31
    s_add_u32 s30, s30, {OFF_Z}
    s_add_u32 s31, s31, {LZ}
    v_xor_b32 v3, 16, v{V_LN}
    v_xor_b32 v4, 128, v{V_LN}
    v_xor_b32 v5, 144, v{V_LN}
    """)
    for i in range(8):
        b(f"s_add_u32 m0, s31, {(i >> 2)*4096}")
        b(f"s_add_u32 s33, s30, {(i >> 2)*4096}")
        b(f"buffer_load_dwordx4 v{[V_LN,3,4,5][i & 3]}, s[20:23], s33 offen offset:{(i & 3)*1024} lds")
    b(f"""
    s_lshr_b32 s34, s2, 1
    s_lshl_b32 s34, s34, 4
    s_and_b32 s35, s2, 1
    s_lshl_b32 s35, s35, 2
    s_add_u32 s34, s34, s35
    s_lshl_b32 s35, s25, 3
    s_add_u32 s34, s34, s35
    s_lshl_b32 s35, s34, 2
    s_add_u32 s35, s35, {OFF_G}
    s_load_dwordx4 s[36:39], s[46:47], s35
    v_and_b32 v6, 15, v11
    v_lshrrev_b32 v7, 4, v11              ; g
    """)
    for nh in range(2):
        for rr in range(4):
            b(f"""
            v_lshl_add_u32 v8, v7, 2, {rr}
            v_add_u32 v9, {16*nh}, v6
            v_mul_u32_u24 v8, v8, v9
            v_and_b32 v8, 31, v8
            v_cvt_f32_u32 v8, v8
            v_mul_f32 v8, 0x3d000000, v8
            v_cos_f32 v{76+rr}, v8
            v_sin_f32 v{80+rr}, v8
            """)
        b(f"""
        s_nop 0
        v_cvt_pk_bf16_f32 v{BRE+4*nh}, v76, v77
        v_cvt_pk_bf16_f32 v{BRE+4*nh+1}, v78, v79
        v_cvt_pk_bf16_f32 v{BIM+4*nh}, v80, v81
        v_cvt_pk_bf16_f32 v{BIM+4*nh+1}, v82, v83
        v_xor_b32 v{BRE+4*nh+2}, 0x80008000, v{BIM+4*nh}
        v_xor_b32 v{BRE+4*nh+3}, 0x80008000, v{BIM+4*nh+1}
        v_mov_b32 v{BIM+4*nh+2}, v{BRE+4*nh}
        v_mov_b32 v{BIM+4*nh+3}, v{BRE+4*nh+1}
        """)
    for dh in range(2):
        for ip in range(4):
            for e in range(2):
                b(f"""
                v_add_u32 v8, {4*(2*ip+e)}, v7
                v_add_u32 v9, {16*dh}, v6
                v_mul_u32_u24 v8, v8, v9
                v_and_b32 v8, 31, v8
                v_cvt_f32_u32 v8, v8
                v_mul_f32 v8, 0x3d000000, v8
                v_cos_f32 v{76+e}, v8
                v_sin_f32 v{78+e}, -v8
                """)
            b(f"""
            s_nop 0
            v_cvt_pk_bf16_f32 v{C2+4*dh+ip}, v76, v77
            v_cvt_pk_bf16_f32 v{S2+4*dh+ip}, v78, v79
            """)
    b(f"""
    v_bfe_u32 v8, v11, 2, 2
    v_lshl_add_u32 v9, v7, 2, v8
    v_lshlrev_b32 v9, 6, v9
    v_and_b32 v2, 1, v8
    v_and_b32 v8, 2, v8
    v_lshl_or_b32 v2, v8, 2, v2
    v_and_b32 v8, 3, v11
    v_lshlrev_b32 v8, 1, v8
    v_xor_b32 v2, v2, v8
    v_add_u32 v9, v9, v2
    v_lshlrev_b32 v9, 4, v9
    s_lshl_b32 s33, s25, 3
    s_add_u32 s33, s33, {LZ}
    v_add_u32 v2, s33, v9
    v_xor_b32 v3, 16, v2
    v_xor_b32 v4, 128, v2
    v_xor_b32 v5, 144, v2
    v_mov_b32 v8, s33
    s_waitcnt vmcnt(0)
    @BAR
    """)
    for mb in range(8):
        for p in range(2):
            b(f"ds_read_b64_tr_b16 v[{AF+4*mb+2*p}:{AF+4*mb+2*p+1}], v{2 + p + 2*(mb & 1)} offset:{(mb >> 1)*256}")
    b(f"ds_read_b64 v[220:221], v8 offset:16")
    b(f"""
    v_cvt_f32_u32 v9, v6
    v_mul_f32 v222, 0x3a800000, v9        ; d1lo / 1024
    v_add_f32 v223, 0x3c800000, v222      ; (d1lo + 16) / 1024
    v_cvt_f32_u32 v9, v7
    s_waitcnt lgkmcnt(0)
    v_lshlrev_b32 v{ZI}, 16, v220
    v_and_b32 v{ZI+4}, 0xffff0000, v220
    v_lshlrev_b32 v{ZI+8}, 16, v221
    v_and_b32 v{ZI+12}, 0xffff0000, v221
    """)
    for r in range(4):
        b(f"v_xor_b32 v{ZI+4*r+1}, 0x80000000, v{ZI+4*r}")
        b(f"v_mov_b32 v{ZI+4*r+2}, v{ZI+4*r}")
        b(f"v_xor_b32 v{ZI+4*r+3}, 0x80000000, v{ZI+4*r}")
    for nh in range(2):
        for mb in range(8):
            b(mf16(T + 8*mb, AF + 4*mb, BRE + 4*nh, None))
            b(mf16(T + 8*mb + 4, AF + 4*mb, BIM + 4*nh, None))
        def twg(mb):
            tw = 224 + 2*(mb & 1)
            b(f"""
            v_add_f32 v228, {float(4*mb)}, v9
            v_mul_f32 v228, v228, v{222+nh}
            v_cos_f32 v{tw}, v228
            v_sin_f32 v{tw+1}, v228
            """.replace("v_add_f32 v228, 0.0, v9", "v_mov_b32 v228, v9"))
        twg(0)
        for mb in range(8):
            tw = 224 + 2*(mb & 1)
            if mb + 1 < 8: twg(mb + 1)
            else: b("s_nop 0")
            for r in range(4):
                re, im = T + 8*mb + r, T + 8*mb + 4 + r
                b(f"""
                v_mul_f32 v{230+(r&1)}, v{re}, v{tw+1}
                v_mul_f32 v{re}, v{re}, v{tw}
                v_fma_f32 v{re}, -v{im}, v{tw+1}, v{re}
                v_fma_f32 v{im}, v{im}, v{tw}, v{230+(r&1)}
                """)
        for r in range(4):
            for part in range(2):
                for ip in range(4):
                    b(f"v_cvt_pk_bf16_f32 v{TP + 32*nh + 8*r + 4*part + ip}, v{T + 16*ip + 4*part + r}, v{T + 16*ip + 8 + 4*part + r}")
    b("s_nop 1")
    for r in range(4):
        for nh in range(2):
            for dh in range(2):
                o = O + 16*r + 8*dh + 4*nh
                b(mf16(o, TP + 32*nh + 8*r, C2 + 4*dh, ZI + 4*r))
        for nh in range(2):
            for dh in range(2):
                o = O + 16*r + 8*dh + 4*nh
                b(mf16(o, TP + 32*nh + 8*r + 4, S2 + 4*dh, o))
    b(f"""
    v_lshlrev_b32 v2, 6, v6
    v_and_b32 v3, 1, v7
    v_lshl_add_u32 v2, v3, 5, v2
    v_lshrrev_b32 v3, 1, v7
    v_lshl_add_u32 v2, v3, 4, v2
    s_lshl_b32 s33, s34, 11
    s_add_u32 s33, s33, {OFF_GA}
    s_add_u32 s35, s33, 4096
    """)
    for r in range(4):
        for dh in range(2):
            o = O + 16*r + 8*dh
            d = AF + 8*r + 4*dh
            for e in range(8): b(f"v_mul_f32 v{o+e}, s{36+r}, v{o+e}")
            for e in range(4): b(f"v_cvt_pk_bf16_f32 v{d+e}, v{o+2*e}, v{o+2*e+1}")
            b(f"""
            s_nop 1
            v_permlane16_swap_b32 v{d}, v{d+2}
            v_permlane16_swap_b32 v{d+1}, v{d+3}
            """)
            b(f"buffer_store_dwordx4 v[{d}:{d+3}], v2, s[20:23], {'s33' if r < 2 else 's35'} offen offset:{(r & 1)*2048 + dh*1024} sc1")
    b(f"""
    s_lshr_b32 s33, s2, 4
    s_lshl_b32 s33, s33, 4
    v_mov_b32 v2, 1
    v_mov_b32 v3, 0
    @NOBAR
    s_waitcnt vmcnt(0)
    s_mov_b64 exec, 1
    buffer_atomic_add v2, v3, s[92:95], s33 offen sc1
    """)
    per = opt.get("p3per", 56)
    n = 0; nbar = 0
    for l in b.lines:
        if "@NOBAR" in l:
            per = 1 << 30; continue
        if "@BAR" in l:
            a("s_barrier"); nbar += 1; n = 0; continue
        a(l)
        n += 2 if ("v_mfma" in l or "v_pk_" in l or "v_cos" in l or "v_sin" in l) else 1
        if n >= per and "s_mov_b64 exec" not in l and "buffer_atomic" not in l:
            a("s_barrier"); nbar += 1; n = 0
    assert nbar <= NST, nbar
    print("pass3 barriers", nbar, file=sys.stderr)
    ts(a, 3, opt)
    ts_flush(a, opt, 1, 8)
    a("s_endpgm")

def gen_k2(a, opt):
    a.begin("k2_kernel")
    a(f"""
    s_cmp_ge_u32 s2, 256
    s_cbranch_scc1 K2_end
    s_load_dwordx2 s[40:41], s[0:1], 48
    s_load_dwordx2 s[42:43], s[0:1], 64
    s_load_dwordx4 s[44:47], s[0:1], 72
    """)
    ts(a, 0, opt)
    a(f"""
    v_lshrrev_b32 v1, 6, v0
    v_and_b32 v11, 63, v0
    s_and_b32 s28, s2, 1             ; K half
    v_readfirstlane_b32 s3, v1
    s_lshr_b32 s29, s2, 3
    s_bfe_u32 s26, s2, 0x10001
    s_lshl_b32 s26, s26, 3
    s_and_b32 s27, s29, 7
    s_add_u32 s26, s26, s27          ; mt
    s_bfe_u32 s27, s2, 0x10002
    s_lshl_b32 s27, s27, 2
    s_lshr_b32 s29, s29, 3
    s_add_u32 s27, s27, s29          ; nt
    v_lshlrev_b32 v{V_LN}, 4, v11
    s_waitcnt lgkmcnt(0)
    """)
    srd(a, 20, "s46", "s47", WS_BYTES)
    srd(a, 12, "s40", "s41", F*D*2)
    srd(a, 16, "s42", "s43", S*D*2)
    srd(a, 92, "s44", "s45", 256)
    a("""
    s_cmp_lt_u32 s3, 4
    s_cbranch_scc1 K2_comp
    s_cmp_lt_u32 s3, 6
    s_cbranch_scc1 K2_p3
    """)
    a(f"""
    s_setprio 3
    s_sub_u32 s25, s3, 6
    s_lshl_b32 s24, s25, 13
    s_mul_i32 s30, s26, 56
    s_mul_i32 s31, s28, {NST}
    s_add_u32 s30, s30, s31
    s_lshl_b32 s30, s30, 14
    s_add_u32 s30, s30, s24
    s_lshl_b32 s31, s31, 17
    s_lshl_b32 s32, s25, 16
    s_add_u32 s31, s31, s32
    s_lshl_b32 s32, s27, 8
    s_add_u32 s31, s31, s32
    v_lshrrev_b32 v4, 4, v11
    v_and_b32 v5, 15, v11
    v_lshlrev_b32 v6, 1, v4
    v_xor_b32 v5, v5, v6
    v_lshlrev_b32 v5, 4, v5
    v_lshl_add_u32 v2, v4, 11, v5
    v_xor_b32 v3, 128, v2
    """)
    for t in range(3): k2_issue(a, t)
    a("s_waitcnt vmcnt(32)")
    k2_issue(a, 3)
    a("s_barrier")
    for t in range(NST - 1):
        left = min(NST - 1, t + 3) - (t + 1)
        a(f"s_waitcnt vmcnt({16*left})")
        a("s_barrier")
        if t + 4 < NST: k2_issue(a, t + 4)
    a("s_endpgm")
    a("K2_p3:")
    gen_pass3(a, opt)
    a("K2_comp:")
    a(f"""
    s_setprio 2
    s_and_b32 s24, s3, 1             ; wm
    s_lshr_b32 s25, s3, 1            ; wn
    s_lshl_b32 s30, s24, 12
    v_add_u32 v{V_HRD}, s30, v{V_LN}
    v_add_u32 v{V_HRD+1}, 65536, v{V_HRD}
    v_lshrrev_b32 v4, 2, v11
    v_lshlrev_b32 v5, 8, v4
    v_and_b32 v4, 7, v4
    s_lshl_b32 s30, s25, 2
    v_xor_b32 v4, s30, v4
    v_lshl_add_u32 v5, v4, 5, v5
    v_and_b32 v4, 3, v11
    v_lshl_add_u32 v{V_DRD}, v4, 3, v5
    """)
    for nb in range(1, 4): a(f"v_xor_b32 v{V_DRD+nb}, {32*nb}, v{V_DRD}")
    for nb in range(4): a(f"v_add_u32 v{V_DRD+4+nb}, 65536, v{V_DRD+nb}")
    a(f"""
    s_lshl_b32 s30, s26, 7
    s_lshl_b32 s31, s24, 6
    s_add_u32 s30, s30, s31
    s_lshl_b32 s31, s28, 5
    s_add_u32 s30, s30, s31
    v_and_b32 v4, 15, v11
    v_add_u32 v4, s30, v4
    v_lshlrev_b32 v5, 2, v4
    s_mov_b32 s31, {OFF_G + 8192}
    buffer_load_dword v20, v5, s[20:23], s31 offen
    buffer_load_dword v21, v5, s[20:23], s31 offen offset:64
    v_lshlrev_b32 v4, 11, v4
    v_bfe_u32 v5, v11, 4, 1
    v_lshl_add_u32 v4, v5, 5, v4
    v_lshrrev_b32 v5, 5, v11
    v_lshl_add_u32 v4, v5, 4, v4
    s_lshl_b32 s30, s27, 8
    s_lshl_b32 s31, s25, 7
    s_add_u32 s30, s30, s31
    v_add_u32 v22, s30, v4
    s_barrier
    """)
    ts(a, 1, opt); ts(a, 4, opt, True)
    for g in k2_reads(0, 0, 0):
        for l in g: a(l)
    a("s_waitcnt lgkmcnt(0)")
    for t in range(NST):
        for l in weave(k2_mfmas(0, t == 0), spread(k2_reads(1, t, 1), 16, 0, 1)): a(l)
        a("s_waitcnt lgkmcnt(0)")
        if t + 1 < NST:
            a("s_barrier")
            for l in weave(k2_mfmas(1), spread(k2_reads(0, t + 1, 0), 16, 0, 1)): a(l)
            a("s_waitcnt lgkmcnt(0)")
        else:
            for l in k2_mfmas(1): a(l)
    ts(a, 2, opt); ts(a, 5, opt, True)
    a(f"""
    s_lshl_b32 s30, s2, 15
    s_lshl_b32 s31, s3, 13
    s_add_u32 s30, s30, s31
    s_add_u32 s30, s30, {OFF_PART}
    s_xor_b32 s31, s30, 32768
    s_add_u32 s32, s30, 4096
    s_add_u32 s33, s31, 4096
    s_lshl_b32 s34, s2, 4
    s_lshl_b32 s35, s3, 2
    s_add_u32 s34, s34, s35
    s_add_u32 s34, s34, {OFF_FLAG}
    s_xor_b32 s35, s34, 16
    s_lshl_b32 s36, s26, 4
    s_cmp_eq_u32 s28, 0
    s_cbranch_scc1 K2_x0
    """)
    for kh in (1, 0):
        if kh == 0: a("K2_x0:")
        snd = ACC + (32 if kh == 0 else 0); kp = ACC + (0 if kh == 0 else 32)
        for n in range(8):
            a(f"buffer_store_dwordx4 v[{snd+4*n}:{snd+4*n+3}], v{V_LN}, s[20:23], {'s30' if n < 4 else 's32'} offen offset:{(n & 3)*1024} sc1")
        a(f"""
        v_mov_b32 v24, 1
        v_mov_b32 v25, 0
        s_waitcnt vmcnt(0)
        s_mov_b64 exec, 1
        buffer_store_dword v24, v25, s[20:23], s34 offen sc1
        s_mov_b64 exec, -1
        """)
        ts(a, 7, opt)
        poll(a, f"K2_pg{kh}", 92, "s36", 32, 26)
        a(f"""
        s_mov_b32 s37, {OFF_GA}
        s_mov_b32 s38, {OFF_GA + 16*2048}
        """)
        for n in range(4):
            a(f"buffer_load_dwordx4 v[{160+4*n}:{163+4*n}], v22, s[20:23], {'s37' if n < 2 else 's38'} offen offset:{(n & 1)*64} sc1")
        poll(a, f"K2_pp{kh}", 20, "s35", 1, 26)
        ts(a, 6, opt)
        for n in range(8):
            a(f"buffer_load_dwordx4 v[{128+4*n}:{131+4*n}], v{V_LN}, s[20:23], {'s31' if n < 4 else 's33'} offen offset:{(n & 3)*1024} sc1")
        a(f"s_mov_b32 s37, {16*2048}")
        for n in range(4):
            mb, pr = n >> 1, n & 1
            X = kp + 16*mb + 8*pr; P = 128 + 8*n; G = 160 + 4*n
            a(f"s_waitcnt vmcnt({6 - 2*n + n})")
            for e in range(0, 8, 2): a(f"v_pk_add_f32 v[{X+e}:{X+e+1}], v[{X+e}:{X+e+1}], v[{P+e}:{P+e+1}]")
            a("s_nop 0")
            for e in range(4): a(f"v_permlane16_swap_b32 v{X+e}, v{X+4+e}")
            for e in range(4):
                a(f"v_lshlrev_b32 v{P+2*e}, 16, v{G+e}")
                a(f"v_and_b32 v{P+2*e+1}, 0xffff0000, v{G+e}")
            for e in range(8): a(f"v_fma_f32 v{X+e}, v{X+e}, v{20+mb}, v{P+e}")
            for e in range(4): a(f"v_cvt_pk_bf16_f32 v{G+e}, v{X+2*e}, v{X+2*e+1}")
            a(f"buffer_store_dwordx4 v[{G}:{G+3}], v22, s[16:19], {'0' if mb == 0 else 's37'} offen offset:{pr*64}")
        ts(a, 3, opt)
        ts_flush(a, opt, 1, 8)
        a("s_endpgm")
    a("K2_end:")
    a("s_endpgm")
```

```python
import math, sys
from asmgen import Asm

S, D, F = 2048, 1024, 3584
OFF_H    = 0x0000000
OFF_X1   = 0x1000000
OFF_Z    = 0x1400000
OFF_GA   = 0x1800000
OFF_WIMG = 0x1C00000
OFF_G    = 0x2100000
OFF_FLAG = 0x2110000
OFF_TS   = 0x2120000
OFF_PART = 0x2200000
WS_BYTES = 0x10000000

def srd(a, s, lo, hi, nbytes):
    a(f"""
    s_mov_b32 s{s}, {lo}
    s_mov_b32 s{s+1}, {hi}
    s_mov_b32 s{s+2}, {nbytes}
    s_mov_b32 s{s+3}, 0x20000
    """)

def L(s):
    return [l.strip() for l in s.strip("\n").split("\n") if l.strip()]

def weave(mf, slots):
    out = []
    for i, m in enumerate(mf):
        out.append(m)
        out += slots.get(i, [])
    return out

def spread(groups, n_gaps, first, step):
    slots = {}
    g = first
    for grp in groups:
        gg = min(g, n_gaps - 1)
        slots.setdefault(gg, []).extend(grp)
        g += step
    return slots

def merge(*ds):
    out = {}
    for d in ds:
        for k, v in d.items(): out.setdefault(k, []).extend(v)
    return out

def ts(a, idx, opt, cyc=False):
    if not opt.get("ts"): return
    a(f"""{"s_memtime" if cyc else "s_memrealtime"} s[{60+2*idx}:{61+2*idx}]""")

def ts_flush(a, opt, kidx, n):
    if not opt.get("ts"): return
    a("s_waitcnt lgkmcnt(0)")
    a("s_nop 1")
    for i in range(n): a(f"v_mov_b32 v{8+i}, s{60+2*i}")
    a(f"""
    s_lshl_b32 s58, s2, 8
    s_lshl_b32 s59, s3, 5
    s_add_u32 s58, s58, s59
    s_add_u32 s58, s58, {OFF_TS + kidx*0x20000}
    v_mov_b32 v7, 0
    buffer_store_dwordx4 v[8:11], v7, s[20:23], s58 offen
    buffer_store_dwordx4 v[12:15], v7, s[20:23], s58 offen offset:16
    """)

K1_XBASE = 65536
V_ACC = 128
def acc(b, q): return V_ACC + (4*b + q)*4
XF = [32, 80]
WF = [64, 112]
V_XRD = 2
V_WRD = 6
V_XDMA = 8
V_WDMA = 9
V_LN = 10
CH = 12

def k1_reads(buf, u):
    T = u >> 1; kk = u & 1
    slot = T % 3
    base = V_XRD + kk + (2 if slot == 2 else 0)
    xo = slot * 32768 if slot < 2 else 0
    wslot = u % 4
    def wr(q, j):
        o = WF[buf] + 4*q + 2*j
        return [f"ds_read_b64_tr_b16 v[{o}:{o+1}], v{V_WRD + (q & 1)} offset:{wslot*16384 + (q >> 1)*8192 + j*1024}"]
    def xr(b):
        o = XF[buf] + 4*b
        return [f"ds_read_b128 v[{o}:{o+3}], v{base} offset:{xo + b*2048}"]
    r = [xr(0)]
    for q in range(4): r += [wr(q, 0), wr(q, 1)]
    r += [xr(b) for b in range(1, 8)]
    return r

def k1_mfmas(buf):
    m = []
    for b in range(8):
        qs = range(4) if b % 2 == 0 else range(3, -1, -1)
        for q in qs:
            c = acc(b, q)
            m.append(f"v_mfma_f32_16x16x32_bf16 v[{c}:{c+3}], v[{WF[buf]+4*q}:{WF[buf]+4*q+3}], v[{XF[buf]+4*b}:{XF[buf]+4*b+3}], v[{c}:{c+3}]")
    return m

def k1_dma_w(u):
    slot = u % 4
    return [[f"s_add_u32 m0, s24, {slot*16384}", f"s_mov_b32 s30, {u*32*7168}",
             f"buffer_load_dwordx4 v{V_WDMA}, s[12:15], s30 offen lds"],
            [f"s_add_u32 m0, s24, {slot*16384 + 8192}", "s_nop 0",
             f"buffer_load_dwordx4 v{V_WDMA}, s[16:19], s30 offen lds"]]

def k1_dma_x(T, half):
    slot = T % 3
    r = []
    for j in (2*half, 2*half+1):
        r.append([f"s_add_u32 m0, s24, {K1_XBASE + slot*32768 + j*8192}", f"s_mov_b32 s31, {j*64*2048 + T*128}",
                  f"buffer_load_dwordx4 v{V_XDMA}, s[8:11], s31 offen lds"])
    return r

def chore_gate_loads(c):
    return [L(f"""
    s_lshl_b32 s56, s2, 3
    s_add_u32 s56, s56, s3
    s_lshl_b32 s57, s56, 11
    v_lshlrev_b32 v{c+16}, 1, v{V_LN}
    buffer_load_dwordx4 v[{c}:{c+3}], v{c+16}, s[8:11], s57 offen
    """), [f"buffer_load_dwordx4 v[{c+4}:{c+7}], v{c+16}, s[8:11], s57 offen offset:16"],
          [f"buffer_load_dwordx4 v[{c+8}:{c+11}], v{c+16}, s[52:55], 0 offen"],
          [f"buffer_load_dwordx4 v[{c+12}:{c+15}], v{c+16}, s[52:55], 0 offen offset:16"]]

def chore_gate_compute(c):
    t = c + 16
    g = []
    for i in range(8):
        x = c + i; w = c + 8 + i
        g.append(L(f"""
        v_lshlrev_b32 v{t}, 16, v{x}
        v_lshlrev_b32 v{t+1}, 16, v{w}
        v_and_b32 v{x}, 0xffff0000, v{x}
        v_and_b32 v{w}, 0xffff0000, v{w}
        """))
        g.append(L(f"""
        v_mul_f32 v{t}, v{t}, v{t+1}
        v_mul_f32 v{x}, v{x}, v{w}
        v_cvt_pk_bf16_f32 v{t}, v{t}, v{x}
        """))
        if i == 0:
            g.append(L(f"""
            v_lshlrev_b32 v{t+2}, 16, v{t}
            v_and_b32 v{t+3}, 0xffff0000, v{t}
            """))
        else:
            g.append(L(f"""
            v_lshlrev_b32 v{t+1}, 16, v{t}
            v_and_b32 v{t}, 0xffff0000, v{t}
            v_add_f32 v{t+2}, v{t+2}, v{t+1}
            v_add_f32 v{t+3}, v{t+3}, v{t}
            """))
    g.append([f"v_add_f32 v{t}, v{t+2}, v{t+3}", "s_nop 1"])
    for sh in (1, 2, 4, 8):
        g.append([f"v_add_f32_dpp v{t}, v{t}, v{t} row_shr:{sh} row_mask:0xf bank_mask:0xf bound_ctrl:0", "s_nop 1"])
    g.append(L(f"""
    v_readlane_b32 s58, v{t}, 15
    v_readlane_b32 s59, v{t}, 31
    v_readlane_b32 s88, v{t}, 47
    v_readlane_b32 s89, v{t}, 63
    s_nop 1
    """))
    g.append(L(f"""
    v_mov_b32 v{t}, s58
    v_add_f32 v{t}, s59, v{t}
    v_mov_b32 v{t+1}, s88
    v_add_f32 v{t+1}, s89, v{t+1}
    """))
    g.append(L(f"""
    v_add_f32 v{t}, v{t}, v{t+1}
    v_cvt_pk_bf16_f32 v{t}, v{t}, v{t}
    v_and_b32 v{t}, 0xffff0000, v{t}
    v_mul_f32 v{t}, 0xbfb8aa3b, v{t}
    """))
    g.append(L(f"""
    v_exp_f32 v{t}, v{t}
    s_nop 0
    v_add_f32 v{t}, 1.0, v{t}
    """))
    g.append(L(f"""
    v_rcp_f32 v{t}, v{t}
    s_nop 0
    v_cvt_pk_bf16_f32 v{t}, v{t}, v{t}
    v_and_b32 v{t}, 0xffff0000, v{t}
    """))
    g.append(L(f"""
    v_sub_f32 v{t+1}, 1.0, v{t}
    v_cvt_pk_bf16_f32 v{t+1}, v{t+1}, v{t+1}
    v_and_b32 v{t+1}, 0xffff0000, v{t+1}
    v_cmp_eq_u32 vcc, 0, v{V_LN}
    """))
    g.append(L(f"""
    v_lshlrev_b32 v{t+2}, 9, v{V_LN}
    s_lshl_b32 s58, s56, 2
    s_add_u32 s58, s58, {OFF_G}
    v_cndmask_b32 v{t}, v{t+1}, v{t}, vcc
    """))
    g.append(L(f"""
    s_mov_b64 exec, 3
    buffer_store_dword v{t}, v{t+2}, s[20:23], s58 offen
    s_mov_b64 exec, 1
    v_mov_b32 v{t+1}, 0
    s_lshl_b32 s58, s56, 1
    s_add_u32 s58, s58, {OFF_FLAG}
    buffer_store_short v{t+1}, v{t+1}, s[20:23], s58 offen
    s_mov_b64 exec, -1
    s_nop 3
    """))
    return g

def chore_w_loads(c):
    g = [L(f"""
    s_lshr_b32 s84, s2, 4
    s_and_b32 s85, s2, 15
    s_lshl_b32 s86, s84, 7
    s_lshl_b32 s87, s3, 2
    s_add_u32 s86, s86, s87
    v_lshrrev_b32 v{c+16}, 8, v{V_LN}
    v_add_u32 v{c+17}, s86, v{c+16}
    """), L(f"""
    v_mul_u32_u24 v{c+17}, 1026, v{c+17}
    v_bfe_u32 v{c+18}, v{V_LN}, 4, 4
    v_lshl_add_u32 v{c+17}, v{c+18}, 2, v{c+17}
    s_lshl_b32 s87, s85, 6
    """)]
    for r in range(4):
        g.append([f"buffer_load_dword v{c+r}, v{c+17}, s[76:79], s87 offen"])
        g.append([f"buffer_load_dword v{c+4+r}, v{c+17}, s[80:83], s87 offen", f"s_add_u32 s87, s87, {32*1026}"])
    return g

def chore_w_store(c):
    g = [L(f"""
    s_lshl_b32 s58, s85, 18
    s_lshl_b32 s59, s84, 9
    s_add_u32 s58, s58, s59
    s_lshl_b32 s59, s3, 6
    s_add_u32 s58, s58, s59
    s_add_u32 s58, s58, {OFF_WIMG}
    v_lshlrev_b32 v{c+18}, 14, v{c+18}
    v_lshl_add_u32 v{c+18}, v{c+16}, 4, v{c+18}
    s_add_u32 s59, s58, 8192
    s_mov_b32 s88, 0x05040100
    s_mov_b32 s89, 0x07060302
    """)]
    for r in range(4):
        g.append([f"v_perm_b32 v{c+8+r}, v{c+4+r}, v{c+r}, s88", f"v_perm_b32 v{c+12+r}, v{c+4+r}, v{c+r}, s89"])
    g.append([f"buffer_store_dwordx4 v[{c+8}:{c+11}], v{c+18}, s[20:23], s58 offen sc1"])
    g.append([f"buffer_store_dwordx4 v[{c+12}:{c+15}], v{c+18}, s[20:23], s59 offen sc1"])
    return g

def nvm(groups):
    return sum(1 for g in groups for l in g if l.startswith("buffer_"))

def k1_loop(a, opt):
    NU = 32
    def dma(u):
        g = []
        if opt.get("nodma") and u >= 0: return g
        if u + 4 < NU: g += k1_dma_w(u + 4)
        if u % 2 == 0:
            T = u//2 + 2
            if T < 16: g += k1_dma_x(T, 1)
        else:
            T = (u-1)//2 + 3
            if T < 16: g += k1_dma_x(T, 0)
        return g
    ch = {}
    if opt.get("chores", True):
        cs = opt.get("cs", "t")
        if "t" in cs: ch[29] = chore_gate_loads(CH)
        if "l" in cs: ch[opt.get("wl",1)] = chore_w_loads(CH)
        if "s" in cs: ch[5] = chore_w_store(CH)
        if "p" in cs: ch[5] = [[l.replace(" sc1","") for l in g] for g in chore_w_store(CH)]
        if "g" in cs:
            ch[6] = chore_gate_loads(CH)
            gc = chore_gate_compute(CH)
            ch[10] = gc[:14]; ch[11] = gc[14:28]; ch[12] = gc[28:]
    cnt = {u: nvm(dma(u)) + nvm(ch.get(u, [])) for u in range(-5, NU)}
    for u in range(NU):
        buf = u & 1
        if u > 0:
            if u < NU - 1:
                n = cnt[u-2] + cnt[u-1]
                a(f"s_waitcnt vmcnt({n}) lgkmcnt(0)")
                if not opt.get("nobar"): a("s_barrier")
            else:
                a("s_waitcnt lgkmcnt(0)")
        if u == 9 and opt.get("chores", True) and "a" in opt.get("cs", "t"):
            a(f"""
            s_cmp_lg_u32 s3, 0
            s_cbranch_scc1 K1_nosig
            v_mov_b32 v{CH+18}, 1
            v_mov_b32 v{CH+19}, 0
            s_mov_b64 exec, 1
            buffer_atomic_add v{CH+18}, v{CH+19}, s[92:95], 0 offen sc1
            s_mov_b64 exec, -1
            s_nop 3
            K1_nosig:
            """)
        mf = k1_mfmas(buf)
        rd = k1_reads(buf ^ 1, u + 1) if u + 1 < NU else []
        if opt.get("nord"): rd = []
        sl = merge(spread(rd, 32, opt.get("rd0", 0), opt.get("rds", 1)), spread(dma(u), 32, opt.get("dma0", 2), opt.get("dmas", 4)), spread(ch.get(u, []), 32, 17, 1))
        if opt.get("nobar") : pass
        for l in weave(mf, sl): a(l)

def gen_k1(a, opt):
    a.begin("k1_kernel")
    a(f"""
    s_cmp_ge_u32 s2, 256
    s_cbranch_scc1 K1_end
    s_load_dwordx2 s[4:5], s[0:1], 0
    s_load_dwordx4 s[40:43], s[0:1], 32
    s_load_dwordx4 s[36:39], s[0:1], 8
    s_load_dwordx2 s[48:49], s[0:1], 56
    s_load_dwordx4 s[44:47], s[0:1], 72
    """)
    ts(a, 0, opt)
    a(f"""
    v_lshrrev_b32 v1, 6, v0
    v_and_b32 v11, 63, v0            ; lane
    s_and_b32 s28, s2, 7
    v_readfirstlane_b32 s3, v1       ; wave
    s_lshr_b32 s29, s2, 3
    s_and_b32 s26, s28, 1
    s_lshl_b32 s26, s26, 2
    s_and_b32 s27, s29, 3
    s_add_u32 s26, s26, s27
    s_lshr_b32 s27, s28, 1
    s_mul_i32 s27, s27, 7
    s_lshr_b32 s25, s29, 2
    s_add_u32 s27, s27, s25
    s_lshl_b32 s24, s3, 10
    v_lshlrev_b32 v{V_LN}, 4, v11
    s_lshl_b32 s50, s26, 8
    s_lshl_b32 s51, s3, 3
    s_add_u32 s50, s50, s51
    v_lshrrev_b32 v3, 3, v11
    v_add_u32 v4, s50, v3
    v_lshlrev_b32 v4, 11, v4
    s_and_b32 s52, s3, 1
    s_lshl_b32 s52, s52, 2
    v_lshrrev_b32 v5, 1, v3
    v_or_b32 v5, s52, v5
    v_and_b32 v6, 7, v11
    v_xor_b32 v5, v5, v6
    v_lshl_add_u32 v{V_XDMA}, v5, 4, v4
    v_lshrrev_b32 v3, 4, v11
    s_and_b32 s52, s3, 2
    s_lshl_b32 s52, s52, 1
    v_or_b32 v5, s52, v3
    v_lshlrev_b32 v5, 1, v5
    v_and_b32 v4, 15, v11
    v_xor_b32 v4, v4, v5
    s_lshl_b32 s52, s3, 2
    v_add_u32 v3, s52, v3
    v_mul_u32_u24 v5, 7168, v3
    v_lshl_add_u32 v5, v4, 4, v5
    s_lshl_b32 s52, s27, 8
    v_add_u32 v{V_WDMA}, s52, v5
    s_waitcnt lgkmcnt(0)
    """)
    srd(a, 8, "s4", "s5", S*D*2)
    srd(a, 12, "s40", "s41", D*F*2)
    srd(a, 16, "s42", "s43", D*F*2)
    a("s_cmp_ge_u32 s29, 28")
    a("s_cbranch_scc1 K1_fft")
    for g in k1_dma_x(0, 0) + k1_dma_w(0) + k1_dma_x(0, 1) + k1_dma_w(1) + k1_dma_x(1, 0) + k1_dma_w(2) + k1_dma_x(1, 1) + k1_dma_w(3) + k1_dma_x(2, 0):
        for l in g: a(l)
    ts(a, 6, opt)
    srd(a, 20, "s46", "s47", WS_BYTES)
    srd(a, 52, "s48", "s49", D*2)
    srd(a, 76, "s36", "s37", S*513*2)
    srd(a, 80, "s38", "s39", S*513*2)
    srd(a, 92, "s44", "s45", 256)
    for r in range(V_ACC, 256): a(f"v_mov_b32 v{r}, 0")
    a(f"""
    v_and_b32 v12, 15, v11
    v_lshrrev_b32 v13, 4, v11        ; g
    s_and_b32 s58, s3, 1
    s_lshl_b32 s58, s58, 7
    v_add_u32 v14, s58, v12
    v_lshlrev_b32 v14, 7, v14
    v_add_u32 v14, {K1_XBASE}, v14
    v_lshrrev_b32 v15, 1, v12
    v_xor_b32 v15, v15, v13
    v_lshl_add_u32 v{V_XRD}, v15, 4, v14
    v_xor_b32 v{V_XRD+1}, 64, v{V_XRD}
    v_add_u32 v{V_XRD+2}, 65536, v{V_XRD}
    v_add_u32 v{V_XRD+3}, 65536, v{V_XRD+1}
    v_bfe_u32 v14, v11, 2, 2
    v_lshl_add_u32 v15, v13, 3, v14
    v_lshlrev_b32 v15, 8, v15
    v_and_b32 v13, 1, v13
    v_lshl_or_b32 v14, v13, 2, v14
    s_and_b32 s59, s3, 6             ; 2 wn
    v_xor_b32 v14, s59, v14
    v_lshl_add_u32 v15, v14, 5, v15
    v_and_b32 v14, 3, v11
    v_lshl_add_u32 v{V_WRD}, v14, 3, v15
    v_xor_b32 v{V_WRD+1}, 32, v{V_WRD}
    s_waitcnt vmcnt(12)
    s_barrier
    """)
    ts(a, 1, opt); ts(a, 4, opt, True)
    for g in k1_reads(0, 0):
        for l in g: a(l)
    a("s_waitcnt vmcnt(8) lgkmcnt(0)")
    a("s_barrier")
    if opt.get("prio"):
        a(f"s_cmp_ge_u32 s3, 4\ns_cbranch_scc0 K1_np\ns_setprio {opt['prio']}\nK1_np:")
    k1_loop(a, opt)
    ts(a, 2, opt); ts(a, 5, opt, True)
    a(f"""
    s_and_b32 s58, s3, 1
    s_lshl_b32 s59, s26, 1
    s_add_u32 s58, s58, s59          ; mt128
    s_mul_i32 s58, s58, 112
    s_lshl_b32 s59, s27, 2
    s_add_u32 s58, s58, s59
    s_lshr_b32 s59, s3, 1
    s_add_u32 s58, s58, s59
    s_lshl_b32 s58, s58, 13
    s_mov_b32 s88, 0xbfb8aa3b
    s_add_u32 s59, s58, 4096
    s_nop 4
    """)
    for b in range(8):
        t0 = 32 + 16*(b % 3)
        G = acc(b, 0); U = acc(b, 2)
        for i in range(8): a(f"v_mul_f32 v{t0+i}, s88, v{G+i}")
        for i in range(8): a(f"v_exp_f32 v{t0+i}, v{t0+i}")
        for i in range(0, 8, 2): a(f"v_pk_mul_f32 v[{U+i}:{U+i+1}], v[{G+i}:{G+i+1}], v[{U+i}:{U+i+1}]")
        for i in range(0, 8, 2): a(f"v_pk_add_f32 v[{t0+i}:{t0+i+1}], v[{t0+i}:{t0+i+1}], 1.0 op_sel_hi:[1,0]")
        for i in range(8): a(f"v_rcp_f32 v{t0+i}, v{t0+i}")
        a("s_nop 0")
        for i in range(0, 8, 2): a(f"v_pk_mul_f32 v[{t0+i}:{t0+i+1}], v[{t0+i}:{t0+i+1}], v[{U+i}:{U+i+1}]")
        for i in range(4): a(f"v_cvt_pk_bf16_f32 v{t0+8+i}, v{t0+2*i}, v{t0+2*i+1}")
        a(f"buffer_store_dwordx4 v[{t0+8}:{t0+11}], v{V_LN}, s[20:23], {'s58' if b < 4 else 's59'} offen offset:{(b%4)*1024}{opt.get('hst','')}")
    if opt.get("chores", True) and "t" in opt.get("cs", "t"):
        a("s_waitcnt vmcnt(8)")
        for g in chore_gate_compute(CH):
            for l in g: a(l)
    ts(a, 3, opt)
    ts_flush(a, opt, 0, 8)
    a("s_endpgm")
    a("K1_fft:")
    if opt.get("fft", True):
        from gen_fft import gen_k1_fft
        gen_k1_fft(a, opt)
    a("K1_end:")
    a("s_endpgm")

HEADER = open("gated_mix__spectral_gfnet__swiglu_ffn__prompt.s.ref").read().split("; Override launch")[0]

def build(opt, kernels=("k1",)):
    a = Asm()
    launches = []; descs = []
    if "k1" in kernels:
        gen_k1(a, opt)
        launches.append(("k1_kernel", (256,1,1), (512,1,1), 163840)); descs.append(("k1_kernel", 256, 96, 256))
    if "k2" in kernels:
        from gen_k2 import gen_k2, K2_LDS
        gen_k2(a, opt)
        launches.append(("k2_kernel", (256,1,1), (512,1,1), K2_LDS)); descs.append(("k2_kernel", 256, 96, 256))
    return a.text(launches, descs, HEADER)

if __name__ == "__main__":
    open("k1.s", "w").write(build(dict(ts=True)))
    open("full_ts.s", "w").write(build(dict(ts=True), ("k1","k2")))
    open("full.s", "w").write(build(dict(), ("k1","k2")))
```
